```python
import torch

def _softmax(x, axis=-1):
    return torch.softmax(x, dim=axis)
def _gelu(x):
    return torch.nn.functional.gelu(x, approximate="tanh")
def _silu(x):
    return torch.nn.functional.silu(x)
def _sigmoid(x):
    return torch.sigmoid(x)
def _layernorm(x, axis=-1, eps=1e-5):
    m = x.mean(dim=axis, keepdim=True)
    v = x.var(dim=axis, keepdim=True, unbiased=False)
    return (x - m) / torch.sqrt(v + eps)
def _scatter_add(tgt, idx, src, axis=0):
    return tgt.clone().index_add_(axis, idx, src)
def _segment_sum(src, seg, n):
    out = torch.zeros((n,) + src.shape[1:], dtype=src.dtype)
    return out.index_add_(0, seg, src)
def _pad(x, pw):
    flat = tuple(v for pair in reversed(pw) for v in pair)
    return torch.nn.functional.pad(x, flat)

kernel_name = 'sequential_preLN__ssm_conv_h3__dense_activation_mish__prompt'

def setup_inputs():

    _w = (lambda a: (lambda t: t.to(torch.bfloat16) if t.is_floating_point() else t)(torch.as_tensor(a)))
    def _A_setup():
        B, S, D = 1, 2048, 576
        ks = 4
        return {
            "q": _w((lambda *s: torch.randn(*s, dtype=torch.bfloat16) * 0.05)(B, S, D)),
            "k": _w((lambda *s: torch.randn(*s, dtype=torch.bfloat16) * 0.2)(B, S, D)),
            "v": _w((lambda *s: torch.randn(*s, dtype=torch.bfloat16) * 0.2)(B, S, D)),
            "shift_k": _w((lambda *s: torch.randn(*s, dtype=torch.bfloat16) * 0.2)(D, ks) * 0.5),
            "ssm_k": _w((lambda *s: torch.randn(*s, dtype=torch.bfloat16) * 0.8)(D, S) * (1.0 / S ** 0.5)),
            "ssm_D": _w((lambda *s: torch.randn(*s, dtype=torch.bfloat16) * 0.2)(D)),
        }
    _A_in = _A_setup()

    def _B_setup():
        B, S, D, F = 1, 2048, 576, 4608
        return {
            "x": _w((lambda *s: torch.randn(*s, dtype=torch.bfloat16) * 0.05)(B, S, D)),
            "w1": _w((lambda *s: torch.randn(*s, dtype=torch.bfloat16) * 0.8)(D, F) * (D ** -0.5)),
            "b1": _w((lambda *s: torch.randn(*s, dtype=torch.bfloat16) * 0.2)(F)),
            "w2": _w((lambda *s: torch.randn(*s, dtype=torch.bfloat16) * 0.1)(F, D) * (F ** -0.5)),
        }
    _B_in = _B_setup()

    return {
        "A_q": _A_in["q"],
        "A_k": _A_in["k"],
        "A_v": _A_in["v"],
        "A_shift_k": _A_in["shift_k"],
        "A_ssm_k": _A_in["ssm_k"],
        "A_ssm_D": _A_in["ssm_D"],
        "B_x": _B_in["x"],
        "B_w1": _B_in["w1"],
        "B_b1": _B_in["b1"],
        "B_w2": _B_in["w2"],
    }

def reference(A_q, A_k, A_v, A_shift_k, A_ssm_k, A_ssm_D, B_x, B_w1, B_b1, B_w2):
    def _A_ref(q, k, v, shift_k, ssm_k, ssm_D):
        B, S, D = q.shape
        ks = shift_k.shape[-1]
        k_pad = _pad(k, ((0, 0), (ks - 1, 0), (0, 0)))
        k_shift = torch.zeros_like(k)
        for t in range(ks):
            k_shift = k_shift + k_pad[:, t:t + S, :] * shift_k[:, ks - 1 - t][None, None, :]
        kv = k_shift * v
        L = 2 * S
        kv_pad = _pad(kv, ((0, 0), (0, S), (0, 0)))
        kf_pad = _pad(ssm_k, ((0, 0), (0, S)))
        kv_f = (lambda x, axes=(-2,-1): torch.fft.rfft2(x.float(), dim=axes))(kv_pad[:, None, :, :], axes=(1, 2))
        kf_f = (lambda x, axes=(-2,-1): torch.fft.rfft2(x.float(), dim=axes))(kf_pad[:, None, :], axes=(1, 2))
        kf_f = (lambda x, *d: x.permute(*d))(kf_f, 1, 2, 0)
        y_f = kv_f * kf_f[None, :, :, :]
        y = (lambda x, s, axes=(-2,-1): torch.fft.irfft2(x, s=s, dim=axes).to(torch.bfloat16))(y_f, (1, L), axes=(1, 2))[:, 0, :S, :]
        y = y + kv * ssm_D[None, None, :]
        return q * y

    def _B_ref(x, w1, b1, w2):
        h = torch.einsum("bsd,df->bsf", x, w1) + b1
        sp = torch.log1p(torch.exp(-torch.abs(h))) + torch.where(h > 0, h, torch.zeros_like(h))
        act = h * torch.tanh(sp)
        return torch.einsum("bsf,fd->bsd", act, w2)

    x = A_q
    h = x + _A_ref(_layernorm(x, axis=-1), A_k, A_v, A_shift_k, A_ssm_k, A_ssm_D)
    h2 = h + _B_ref(_layernorm(h, axis=-1), B_w1, B_b1, B_w2)
    return h2
```

```python
import re

def _expand(tok):
    tok = tok.strip()
    neg = tok.lstrip('-')
    m = re.fullmatch(r'abs\((.*)\)', neg)
    if m: neg = m.group(1)
    neg = neg.strip('|')
    m = re.fullmatch(r'([vas])(\d+)', neg)
    if m: return [(m.group(1), int(m.group(2)))]
    m = re.fullmatch(r'([vas])\[(\d+):(\d+)\]', neg)
    if m: return [(m.group(1), i) for i in range(int(m.group(2)), int(m.group(3)) + 1)]
    if neg == 'vcc': return [('s', 106), ('s', 107)]
    if neg == 'vcc_lo': return [('s', 106)]
    if neg == 'vcc_hi': return [('s', 107)]
    if neg == 'exec': return [('x', 0), ('x', 1)]
    if neg == 'm0': return [('m', 0)]
    return []

TRANS = ('v_exp_f32', 'v_log_f32', 'v_rcp_f32', 'v_rsq_f32', 'v_sqrt_f32', 'v_sin_f32', 'v_cos_f32')

class Ins:
    __slots__ = ('text', 'op', 'defs', 'uses', 'kind', 'srcA', 'srcB', 'srcC', 'passes', 'raw', 'dpp', 'wide_store', 'lds_dma', 'cnt')
    def __init__(self, text):
        self.text = text
        t = text.split(';')[0].strip()
        self.raw = t
        self.defs = []; self.uses = []; self.kind = 'other'
        self.srcA = self.srcB = self.srcC = []
        self.passes = 0; self.dpp = False; self.wide_store = False; self.lds_dma = False; self.cnt = 1
        if not t or t.endswith(':') or t.startswith('.'):
            self.op = ''; self.kind = 'label' if t.endswith(':') else 'dir'; return
        sp = t.split(None, 1)
        self.op = op = sp[0]
        rest = sp[1] if len(sp) > 1 else ''
        ops = []; cur = ''; depth = 0
        for ch in rest:
            if ch in '[(': depth += 1
            if ch in '])': depth -= 1
            if ch == ',' and depth == 0: ops.append(cur.strip()); cur = ''
            else: cur += ch
        if cur.strip(): ops.append(cur.strip())
        mods = ''
        if ops:
            last = ops[-1].split()
            ops[-1] = last[0]; mods = ' '.join(last[1:])
        R = [_expand(o) for o in ops]
        allr = lambda l: [r for x in l for r in x]
        if op.startswith('v_mfma'):
            self.kind = 'mfma'; self.defs = R[0]; self.srcA = R[1]; self.srcB = R[2]; self.srcC = R[3]
            self.uses = R[1] + R[2] + R[3]
            self.passes = 4 if '16x16x32' in op else 8
        elif op.startswith('v_'):
            self.kind = 'trans' if op.replace('_e32', '').replace('_e64', '') in TRANS else 'valu'
            self.dpp = ('row_' in mods or 'quad_perm' in mods or 'wave_' in mods or op.endswith('_dpp'))
            if op.startswith('v_cmp'):
                self.defs = R[0]; self.uses = allr(R[1:])
                if op.startswith('v_cmpx'): self.defs = self.defs + [('x', 0), ('x', 1)]
            elif op.startswith('v_permlane') and 'swap' in op or op.startswith('v_swap'):
                self.defs = R[0] + R[1]; self.uses = R[0] + R[1]; self.kind = 'permlane'
            elif op.startswith('v_add_co') or op.startswith('v_addc_co') or op.startswith('v_sub_co') or op.startswith('v_subb_co'):
                self.defs = R[0] + R[1]; self.uses = allr(R[2:])
            elif op.startswith('v_fmac') or op.startswith('v_dot2c') or op.startswith('v_writelane') or op.startswith('v_pk_fmac'):
                self.defs = R[0]; self.uses = allr(R)
            elif op.startswith('v_readfirstlane') or op.startswith('v_readlane'):
                self.defs = R[0]; self.uses = allr(R[1:]); self.kind = 'readlane'
            elif op == 'v_nop':
                pass
            else:
                self.defs = R[0]; self.uses = allr(R[1:])
                if self.dpp: self.uses = self.uses + R[0]
            if op.startswith('v_dot'): self.kind = 'dot'
            if op.startswith('v_cndmask') and len(ops) == 3: self.uses = self.uses + [('s', 106), ('s', 107)]
        elif op.startswith('ds_'):
            self.kind = 'ds'
            if op.startswith('ds_read') or op.startswith('ds_bpermute') or op.startswith('ds_swizzle') or op.startswith('ds_permute'):
                self.defs = R[0]; self.uses = allr(R[1:])
            else:
                self.uses = allr(R)
        elif op.startswith('buffer_') or op.startswith('global_'):
            self.kind = 'vmem'
            mm = mods.split()
            if op in ('buffer_wbl2', 'buffer_inv'):
                pass
            elif 'lds' in mm or '_lds_' in op:
                self.lds_dma = True; self.uses = allr(R) + [('m', 0)]
            elif '_load' in op:
                self.defs = R[0]; self.uses = allr(R[1:])
            elif '_atomic' in op:
                self.uses = allr(R)
                if 'sc0' in mm:
                    self.defs = R[0]
            else:
                self.uses = allr(R)
                self.wide_store = ('x4' in op or 'x3' in op)
        elif op.startswith('s_load') or op.startswith('s_buffer_load') or op in ('s_memtime', 's_memrealtime'):
            self.kind = 'smem'; self.defs = R[0]; self.uses = allr(R[1:])
        elif op.startswith('s_'):
            self.kind = 'salu'
            if op.startswith('s_cmp') or op.startswith('s_bitcmp'):
                self.uses = allr(R)
            elif op.startswith('s_cbranch') or op == 's_branch':
                self.kind = 'branch'
            elif op in ('s_waitcnt', 's_nop', 's_barrier', 's_endpgm', 's_setprio', 's_sleep'):
                self.kind = op[2:]
                if op == 's_nop': self.cnt = int(ops[0], 0) + 1
            elif 'saveexec' in op:
                self.defs = R[0] + [('x', 0), ('x', 1)]; self.uses = allr(R[1:]) + [('x', 0), ('x', 1)]
            elif op.startswith('s_getpc'):
                self.defs = R[0]
            elif op.startswith('s_getreg'):
                self.defs = R[0]
            elif op.startswith('s_addk') or op.startswith('s_mulk') or op.startswith('s_bitset'):
                self.defs = R[0]; self.uses = allr(R)
            else:
                self.defs = R[0] if R else []; self.uses = allr(R[1:])
        else:
            raise ValueError('unknown op ' + text)

def isvalu(i): return i.kind in ('valu', 'trans', 'permlane', 'readlane', 'dot')

class Prog:
    def __init__(self):
        self.l = []
    def __call__(self, text):
        for line in text.split('\n'):
            if line.strip(): self.l.append(Ins(line.strip()))
        return self
    def extend(self, lst):
        for x in lst:
            if isinstance(x, Ins): self.l.append(x)
            else: self(x)

    def insert_waits(self):
        out = []
        vm = []
        lg = []
        stack = []
        def need(pend, regs):
            idx = -1
            for n, p in enumerate(pend):
                if set(p.defs) & regs: idx = n
            return idx
        for ins in self.l:
            txt = ins.text
            if txt.startswith(';@push'):
                stack.append((list(vm), list(lg))); out.append(ins); continue
            if txt.startswith(';@pop'):
                vm, lg = stack.pop(); out.append(ins); continue
            if txt.startswith(';@waitvm'):
                tag = txt.split()[1]
                idx = -1
                for n, p in enumerate(vm):
                    if ('@' + tag) in p.text.split(): idx = n
                if idx >= 0:
                    n = len(vm) - 1 - idx
                    assert n <= 63
                    out.append(Ins(f's_waitcnt vmcnt({n})')); vm = vm[idx + 1:]
                continue
            if ins.kind == 'waitcnt':
                m = re.search(r'vmcnt\((\d+)\)', txt)
                if m:
                    n = int(m.group(1)); vm = vm[len(vm) - n:] if n and len(vm) > n else ([] if n == 0 else vm)
                m = re.search(r'lgkmcnt\((\d+)\)', txt)
                if m:
                    n = int(m.group(1)); lg = lg[len(lg) - n:] if n and len(lg) > n else ([] if n == 0 else lg)
                out.append(ins); continue
            regs = set(ins.uses) | set(ins.defs)
            w = []
            iv = need(vm, regs)
            if iv >= 0:
                n = min(len(vm) - 1 - iv, 63)
                w.append(f'vmcnt({n})'); vm = vm[len(vm) - n:] if n else []
            il = need(lg, regs)
            if il >= 0:
                if any(p.kind == 'smem' for p in lg): n = 0
                else: n = min(len(lg) - 1 - il, 15)
                w.append(f'lgkmcnt({n})'); lg = lg[len(lg) - n:] if n else []
            if w: out.append(Ins('s_waitcnt ' + ' '.join(w)))
            if ins.kind == 'vmem':
                if len(vm) >= 63:
                    out.append(Ins('s_waitcnt vmcnt(62)')); vm = vm[len(vm) - 62:]
                vm.append(ins)
            elif ins.kind in ('ds', 'smem'):
                lg.append(ins)
            out.append(ins)
        self.l = out

    def insert_nops(self):
        out = []
        hist = []
        pos = 0
        def vreg(r): return r[0] in 'va'
        for ins in self.l:
            if ins.kind in ('label', 'dir') or not ins.op:
                out.append(ins); continue
            req = 0
            U = set(ins.uses); D = set(ins.defs)
            for p, pp in reversed(hist):
                dist = pos - pp - p.cnt
                if dist >= 20: break
                n = 0
                PD = set(p.defs)
                if p.kind == 'mfma':
                    big = 8 if p.passes == 4 else 12
                    if ins.kind == 'mfma':
                        if PD & (set(ins.srcA) | set(ins.srcB)): n = max(n, big)
                        if PD & set(ins.srcC):
                            if not (list(p.defs) == list(ins.srcC) and p.passes == ins.passes): n = max(n, 6 if p.passes == 4 else 10)
                        elif PD & D: n = max(n, big)
                    elif isvalu(ins):
                        if PD & (U | D): n = max(n, big)
                        if set(p.srcC) & D: n = max(n, 3 if p.passes == 4 else 7)
                    elif ins.kind in ('ds', 'vmem'):
                        if PD & (U | D): n = max(n, big)
                        if set(p.srcC) & D: n = max(n, 3 if p.passes == 4 else 7)
                if isvalu(p):
                    pv = set(r for r in PD if vreg(r)); ps = set(r for r in PD if r[0] == 's'); px = set(r for r in PD if r[0] == 'x')
                    if ins.kind == 'mfma' and pv & U: n = max(n, 2)
                    if ins.kind == 'mfma' and px: n = max(n, 4)
                    if ins.kind == 'permlane' and pv & U: n = max(n, 2)
                    if ins.kind == 'permlane' and px: n = max(n, 4)
                    if ins.dpp and pv & U: n = max(n, 2)
                    if ins.dpp and px: n = max(n, 5)
                    if ins.kind == 'readlane' and pv & U: n = max(n, 1)
                    if ins.kind == 'readlane' and (ps & U or px): n = max(n, 4)
                    if ins.kind in ('vmem',) and ps & U: n = max(n, 5)
                    if isvalu(ins) and ps & U: n = max(n, 2)
                    if ins.kind in ('salu', 'smem', 'branch') and ps & U: n = max(n, 4)
                    if ins.kind == 'branch' and ps and 'vcc' in ins.op: n = max(n, 4)
                    if p.kind == 'trans' and isvalu(ins) and ins.kind != 'trans' and pv & U: n = max(n, 1)
                    if p.kind == 'trans' and ins.kind == 'trans' and pv & U: n = max(n, 1)
                    if p.kind == 'dot':
                        if isvalu(ins) or ins.kind in ('mfma', 'ds', 'vmem'):
                            if pv & (U | D):
                                same_c = (ins.op == p.op and not (pv & set(ins.uses[:2])) and False)
                                if ins.op == p.op:
                                    ab = set(_srcab(ins))
                                    if pv & ab: n = max(n, 3)
                                else: n = max(n, 3)
                    if p.op.startswith('v_cvt_') and ('sdwa' in p.op): n = max(n, 1) if pv & U else n
                if p.wide_store and isvalu(ins) and set(r for r in p.uses if vreg(r)) & D: n = max(n, 2)
                if p.wide_store and ins.kind in ('ds', 'vmem', 'mfma') and set(r for r in p.uses if vreg(r)) & D: n = max(n, 1)
                if p.kind == 'ds' and p.op in ('ds_write_b128', 'ds_write_b96') and isvalu(ins) and set(p.uses) & D: n = max(n, 2)
                if p.kind == 'salu' and ('m', 0) in PD and ins.lds_dma: n = max(n, 1)
                if n > dist: req = max(req, n - dist)
            while req > 0:
                k = min(req, 16)
                nop = Ins(f's_nop {k - 1}')
                out.append(nop); hist.append((nop, pos)); pos += k; req -= k
            out.append(ins); hist.append((ins, pos)); pos += ins.cnt
            if len(hist) > 40: hist = hist[-40:]
        self.l = out

    def finalize(self):
        self.insert_waits(); self.insert_nops()
        return '\n'.join(('' if (i.kind == 'label') else '  ') + i.text for i in self.l)

def _srcab(ins):
    t = ins.raw.split(None, 1)[1]
    ops = []; cur = ''; depth = 0
    for ch in t:
        if ch in '[(': depth += 1
        if ch in '])': depth -= 1
        if ch == ',' and depth == 0: ops.append(cur.strip()); cur = ''
        else: cur += ch
    ops.append(cur.strip())
    return _expand(ops[1]) + _expand(ops[2].split()[0])

def kd(name, nvgpr, accum, nsgpr=102):
    return f'''.section .rodata,"a"
.p2align 6
.amdhsa_kernel {name}
  .amdhsa_next_free_vgpr {nvgpr}
  .amdhsa_next_free_sgpr {nsgpr}
  .amdhsa_accum_offset {accum}
  .amdhsa_group_segment_fixed_size 0
  .amdhsa_kernarg_size 104
  .amdhsa_user_sgpr_count 2
  .amdhsa_user_sgpr_kernarg_segment_ptr 1
  .amdhsa_system_sgpr_workgroup_id_x 1
  .amdhsa_float_denorm_mode_32 3
.end_amdhsa_kernel
'''
def khead(name):
    return f'.text\n.globl {name}\n.p2align 8\n.type {name},@function\n{name}:'
```

```python
S, D, F = 2048, 576, 4608
ARR = S * D * 2
KA = dict(q=0, k=8, v=16, sk=24, ssm=32, sd=40, bx=48, w1=56, b1=64, w2=72, out=80, dbg=88, ws=96)
WS_KVB = 0x000000
WS_XB  = 0x240000
WS_HB  = 0x480000
WS_ST1 = 0x6C0000
WS_CB  = 0x6C4000
WS_W1P = 0x700000
WS_W2P = 0xC10000
WS_PART= 0x1200000
WBYTES = D * F * 2
LOG2E = 1.4426950408889634
LN2 = 0.6931471805599453
import struct
def f2h(x): return '0x%08x' % struct.unpack('<I', struct.pack('<f', x))[0]

def srd(p, s, ptr, nbytes, add=0):
    if add:
        p(f's_add_u32 s{s}, s{ptr}, {add}')
        p(f's_addc_u32 s{s+1}, s{ptr+1}, 0')
    else:
        p(f's_mov_b32 s{s}, s{ptr}')
        p(f's_mov_b32 s{s+1}, s{ptr+1}')
    p(f's_mov_b32 s{s+2}, {nbytes}')
    p(f's_mov_b32 s{s+3}, 0x20000')
```

```python
from asm import *
from common import *

def gen_k0(name='k0_kernel'):
    p = Prog()
    p(f's_cmp_ge_u32 s2, 256\ns_cbranch_scc1 {name}_end')
    p(f's_load_dwordx4 s[4:7], s[0:1], {KA["q"]}')
    p(f's_load_dwordx4 s[8:11], s[0:1], {KA["v"]}')
    p(f's_load_dwordx2 s[12:13], s[0:1], {KA["ws"]}')
    p('v_lshlrev_b32 v1, 2, v0')
    p('v_mov_b32 v4, 0x7ff00000')
    p('v_cmp_gt_u32 vcc, 0x120, v0')
    p('v_cndmask_b32 v1, v4, v1, vcc')
    p('v_lshlrev_b32 v2, 4, v0')
    p('v_cndmask_b32 v2, v4, v2, vcc')
    p('v_lshlrev_b32 v3, 5, v0')
    p('v_cndmask_b32 v3, v4, v3, vcc')
    p('s_mul_i32 s14, s2, 9216')
    p('s_add_u32 s15, s14, 4608')
    p('s_sub_u32 s33, s14, 3456')
    p('s_cmp_eq_u32 s2, 0')
    p('s_cselect_b32 s33, 0x40000000, s33')
    p('s_waitcnt lgkmcnt(0)')
    srd(p, 16, 4, ARR); srd(p, 20, 6, ARR); srd(p, 24, 8, ARR); srd(p, 28, 10, D * 8)
    srd(p, 36, 12, 2 * ARR)
    srd(p, 40, 12, 16384, add=WS_ST1)
    VQ, VK, VV, VW = 8, 16, 28, 36
    for r in range(8):
        p(f'buffer_load_dword v{VQ+r}, v1, s[16:19], s{14 if r<4 else 15} offen offset:{(r%4)*1152}')
    p(f'buffer_load_dwordx4 v[{VW}:{VW+3}], v2, s[28:31], 0 offen')
    for r in range(3):
        p(f'buffer_load_dword v{VK+r}, v1, s[20:23], s33 offen offset:{r*1152}')
    for r in range(8):
        p(f'buffer_load_dword v{VK+3+r}, v1, s[20:23], s{14 if r<4 else 15} offen offset:{(r%4)*1152}')
    for r in range(8):
        p(f'buffer_load_dword v{VV+r}, v1, s[24:27], s{14 if r<4 else 15} offen offset:{(r%4)*1152}')
    p('s_mov_b32 s34, 0x3f803f80\ns_mov_b32 s35, 0xffff0000')
    p('s_mov_b32 s44, 0x05040100\ns_mov_b32 s45, 0x07060302')
    XO = 40
    for j in range(4):
        p(f'v_perm_b32 v{XO+j}, v{VQ+2*j+1}, v{VQ+2*j}, s44')
        p(f'v_perm_b32 v{XO+4+j}, v{VQ+2*j+1}, v{VQ+2*j}, s45')
    p(f'buffer_store_dwordx4 v[{XO}:{XO+3}], v3, s[36:39], s14 offen offset:0 @XS'.replace(' @XS', '').replace('s14', 's46'))
    p.l.pop()
    p(f's_add_u32 s46, s14, {WS_XB}')
    p(f'buffer_store_dwordx4 v[{XO}:{XO+3}], v3, s[36:39], s46 offen')
    p(f'buffer_store_dwordx4 v[{XO+4}:{XO+7}], v3, s[36:39], s46 offen offset:16')
    SS, SQ = 48, 56
    for r in range(8):
        p(f'v_dot2_f32_bf16 v{SS+r}, v{VQ+r}, s34, 0')
        p(f'v_dot2_f32_bf16 v{SQ+r}, v{VQ+r}, v{VQ+r}, 0')
    p('s_nop 2')
    for r in range(8):
        p(f'v_permlane32_swap_b32 v{SS+r}, v{SQ+r}')
    for r in range(8):
        p(f'v_add_f32 v{SS+r}, v{SS+r}, v{SQ+r}')
    for r in range(4):
        p(f'v_permlane16_swap_b32 v{SS+r}, v{SS+4+r}')
    for r in range(4):
        p(f'v_add_f32 v{SS+r}, v{SS+r}, v{SS+4+r}')
    for sh in (8, 4, 2, 1):
        for r in range(4):
            p(f'v_add_f32_dpp v{SS+r}, v{SS+r}, v{SS+r} row_ror:{sh} row_mask:0xf bank_mask:0xf')
    p('v_lshrrev_b32 v5, 4, v0\nv_lshlrev_b32 v5, 4, v5')
    p(f'ds_write_b128 v5, v[{SS}:{SS+3}]')
    KU = 64
    WU = 86
    VU = 96
    for ch in range(2):
        p(f'v_lshlrev_b32 v{WU+0+ch}, 16, v{VW+2*ch}')
        p(f'v_and_b32 v{WU+2+ch}, s35, v{VW+2*ch}')
        p(f'v_lshlrev_b32 v{WU+4+ch}, 16, v{VW+2*ch+1}')
        p(f'v_and_b32 v{WU+6+ch}, s35, v{VW+2*ch+1}')
    for r in range(11):
        p(f'v_lshlrev_b32 v{KU+2*r}, 16, v{VK+r}')
        p(f'v_and_b32 v{KU+2*r+1}, s35, v{VK+r}')
    ACC = 112
    for r in range(8):
        a = f'v[{ACC+2*r}:{ACC+2*r+1}]'
        kk = lambda i: f'v[{KU+2*i}:{KU+2*i+1}]'
        ww = lambda j: f'v[{WU+2*j}:{WU+2*j+1}]'
        p(f'v_pk_mul_f32 {a}, {kk(r)}, {ww(3)}')
        p(f'v_pk_fma_f32 {a}, {kk(r+1)}, {ww(2)}, {a}')
        p(f'v_pk_fma_f32 {a}, {kk(r+2)}, {ww(1)}, {a}')
        p(f'v_pk_fma_f32 {a}, {kk(r+3)}, {ww(0)}, {a}')
    p('s_waitcnt lgkmcnt(0)\ns_barrier')
    p('v_and_b32 v6, 7, v0')
    p('v_lshlrev_b32 v6, 2, v6')
    T = 128
    for w in range(5):
        p(f'ds_read_b32 v{T+w}, v6 offset:{w*64}')
        p(f'ds_read_b32 v{T+5+w}, v6 offset:{w*64+32}')
    for r in range(8):
        p(f'v_lshlrev_b32 v{VU+2*r}, 16, v{VV+r}')
        p(f'v_and_b32 v{VU+2*r+1}, s35, v{VV+r}')
    for r in range(8):
        a = f'v[{ACC+2*r}:{ACC+2*r+1}]'
        p(f'v_pk_mul_f32 {a}, {a}, v[{VU+2*r}:{VU+2*r+1}]')
    KO = 64
    for ch in range(2):
        for j in range(4):
            p(f'v_cvt_pk_bf16_f32 v{KO+4*ch+j}, v{ACC+2*(7-2*j)+ch}, v{ACC+2*(6-2*j)+ch}')
    p(f'buffer_store_dwordx4 v[{KO}:{KO+3}], v3, s[36:39], s14 offen')
    p(f'buffer_store_dwordx4 v[{KO+4}:{KO+7}], v3, s[36:39], s14 offen offset:16')
    p(f'v_cmp_gt_u32 vcc, 8, v0')
    p(f's_and_saveexec_b64 s[48:49], vcc')
    p(f's_cbranch_execz {name}_end')
    for w in range(1, 5):
        p(f'v_add_f32 v{T}, v{T}, v{T+w}')
        p(f'v_add_f32 v{T+5}, v{T+5}, v{T+5+w}')
    ln_finalize(p, T, T + 5, T + 1, T + 2, 50)
    p(f'v_rcp_f32 v{T+3}, v{T+2}')
    p('s_lshl_b32 s47, s2, 5')
    p(f'buffer_store_dword v{T+1}, v6, s[40:43], s47 offen')
    p('s_add_u32 s47, s47, 8192')
    p(f'buffer_store_dword v{T+3}, v6, s[40:43], s47 offen')
    p(f'{name}_end:\ns_endpgm')
    return khead(name) + '\n' + p.finalize() + '\n' + kd(name, 144, 144)

def ln_finalize(p, vs, vq, vm, vsd, st):
    p(f's_mov_b32 s{st}, {f2h(1.0/576)}')
    p(f'v_mul_f32 v{vs}, s{st}, v{vs}')
    p(f'v_mul_f32 v{vq}, s{st}, v{vq}')
    p(f'v_fma_f32 v{vq}, -v{vs}, v{vs}, v{vq}')
    p(f'v_max_f32 v{vq}, 0, v{vq}')
    p(f'v_cvt_pk_bf16_f32 v{vs}, v{vs}, v{vq}')
    p(f'v_lshlrev_b32 v{vm}, 16, v{vs}')
    p(f'v_and_b32 v{vq}, 0xffff0000, v{vs}')
    p(f'v_add_f32 v{vq}, {f2h(1e-5)}, v{vq}')
    p(f'v_cvt_pk_bf16_f32 v{vq}, v{vq}, v{vq}')
    p(f'v_and_b32 v{vq}, 0xffff0000, v{vq}')
    p(f'v_sqrt_f32 v{vq}, v{vq}')
    p(f'v_cvt_pk_bf16_f32 v{vq}, v{vq}, v{vq}')
    p(f'v_and_b32 v{vsd}, 0xffff0000, v{vq}')

if __name__ == '__main__':
    print(gen_k0())
```

```python
from asm import *
from common import *

OPT = dict(h_store_flags='sc1', wbl2=True, code_prefetch=True)

def interleave(main, fill, start=0, every=None):
    out = []
    n = len(main) - start
    done = 0
    for i, m in enumerate(main):
        out.append(m)
        if i >= start and fill:
            tgt = ((i - start + 1) * len(fill) + n - 1) // n if every is None else min(len(fill), (i - start + 1) * every)
            while done < tgt:
                out.append(fill[done]); done += 1
    out += fill[done:]
    return out

def gen_k1(name='k1_kernel', opt=OPT, k2name='k2_kernel', k3end='k3_kernel_end'):
    p = Prog()
    p(f's_cmp_ge_u32 s2, 240\ns_cbranch_scc1 {name}_end')
    p(f's_load_dwordx4 s[4:7], s[0:1], {KA["ssm"]}')
    p(f's_load_dwordx2 s[8:9], s[0:1], {KA["ws"]}')
    p(f's_load_dwordx4 s[12:15], s[0:1], {KA["w1"]}')
    p(f's_load_dwordx2 s[10:11], s[0:1], {KA["w2"]}')
    p('v_lshrrev_b32 v1, 6, v0')
    p('v_and_b32 v2, 63, v0')
    p('v_readfirstlane_b32 s3, v1')
    p('v_and_b32 v3, 15, v2')
    p('v_lshrrev_b32 v4, 4, v2')
    p('v_lshlrev_b32 v5, 4, v2')
    p(f's_cmp_ge_u32 s2, 144\ns_cbranch_scc1 {name}_repack')
    p(';@push')
    p('s_and_b32 s32, s2, 7\ns_mul_i32 s32, s32, 18\ns_lshr_b32 s33, s2, 3\ns_add_u32 s32, s32, s33')
    p('s_lshl_b32 s32, s32, 2')
    p('s_add_u32 s33, s32, s3')
    p('v_lshrrev_b32 v6, 2, v2\nv_lshl_add_u32 v6, s3, 6, v6')
    p('v_and_b32 v7, 3, v2')
    p('s_movk_i32 s34, 9216')
    p('v_mul_lo_u32 v8, v6, s34')
    p('v_add_u32 v9, s32, v7\nv_lshl_add_u32 v8, v9, 4, v8')
    p('s_lshl_b32 s35, s33, 12')
    p('s_and_b32 s36, s33, 0xfffffffe\ns_lshl_b32 s36, s36, 1')
    p('s_waitcnt lgkmcnt(0)')
    p('s_load_dword s37, s[6:7], s36')
    srd(p, 16, 8, 2 * ARR)
    srd(p, 20, 4, ARR)
    srd(p, 24, 8, 16384, add=WS_ST1)
    srd(p, 28, 8, ARR, add=WS_HB)
    KVS = 16; L0 = 32; L1 = 48; L2 = 64; AL = 80
    for i in range(4):
        p(f's_mov_b32 s38, {i*147456}')
        p(f'buffer_load_dwordx4 v[{KVS+4*i}:{KVS+4*i+3}], v8, s[16:19], s38 offen')
    for i in range(4):
        for o, L in ((0, L0), (4, L1), (8, L2)):
            p(f'buffer_load_dwordx4 v[{L+4*i}:{L+4*i+3}], v5, s[20:23], s35 offen offset:{1024*i+o}')
    p('s_movk_i32 s34, 4576')
    p('v_mul_lo_u32 v9, v7, s34')
    p('v_lshl_add_u32 v9, v6, 4, v9')
    p(f'v_add_u32 v9, {66560+480}, v9')
    p('s_mul_i32 s39, s3, 16640')
    p('v_add_u32 v10, s39, v5')
    p('s_mul_i32 s40, s3, 4576\ns_add_u32 s40, s40, 66560')
    p('v_add_u32 v11, s40, v5')
    p('v_and_b32 v12, 3, v3\ns_movk_i32 s34, 4160\nv_mul_lo_u32 v12, v12, s34')
    p('v_lshl_add_u32 v12, v4, 4, v12\nv_lshrrev_b32 v13, 2, v3\nv_lshl_add_u32 v12, v13, 3, v12\nv_add_u32 v12, s39, v12')
    p('v_lshlrev_b32 v13, 5, v3\nv_lshlrev_b32 v14, 4, v4\nv_sub_u32 v13, v13, v14\ns_add_u32 s41, s40, 48\nv_add_u32 v13, s41, v13')
    for j in range(4): p(f'v_mov_b32 v{88+j}, 0')
    p('s_mov_b32 exec_lo, 0x3fffffff\ns_mov_b32 exec_hi, 0'.replace('exec_lo', 'exec_lo'))
    p('ds_write_b128 v11, v[88:91]')
    p('s_mov_b64 exec, -1')
    for i in range(4):
        p(f'ds_write_b128 v9, v[{KVS+4*i}:{KVS+4*i+3}] offset:{256*i}')
    for i in range(4):
        for j in range(4):
            p(f'v_alignbyte_b32 v{AL+j}, v{L1+4*i+j}, v{L0+4*i+j}, 2')
        p(f'ds_write_b128 v10, v[{AL}:{AL+3}] offset:{32+1024*i}')
        p(f'ds_write_b128 v10, v[{L1+4*i}:{L1+4*i+3}] offset:{32+1024*i+4160}')
        for j in range(4):
            p(f'v_alignbyte_b32 v{AL+4+j}, v{L2+4*i+j}, v{L1+4*i+j}, 2')
        p(f'ds_write_b128 v10, v[{AL+4}:{AL+7}] offset:{32+1024*i+8320}')
        p(f'ds_write_b128 v10, v[{L2+4*i}:{L2+4*i+3}] offset:{32+1024*i+12480}')
        if i == 0:
            p(f'v_readfirstlane_b32 s42, v{L0}\nv_readfirstlane_b32 s43, v{L0+1}')
    p('s_lshl_b32 s44, s42, 16')
    p('s_lshr_b32 s45, s42, 16\ns_lshl_b32 s46, s43, 16\ns_or_b32 s45, s45, s46')
    p('v_mov_b32 v92, 0\nv_mov_b32 v93, 0\nv_mov_b32 v94, 0\nv_mov_b32 v95, s44')
    p('v_writelane_b32 v94, s44, 2\nv_writelane_b32 v94, s42, 3')
    p('v_writelane_b32 v95, s42, 1\nv_writelane_b32 v95, s45, 2\nv_writelane_b32 v95, s43, 3')
    p('s_movk_i32 s34, 4160\nv_mul_lo_u32 v14, v2, s34\nv_add_u32 v14, s39, v14')
    p('s_mov_b64 exec, 15')
    p('ds_write_b128 v14, v[88:91]\nds_write_b128 v14, v[92:95] offset:16')
    p('s_mov_b64 exec, -1')
    p('s_and_b32 s46, s33, 1\ns_lshl_b32 s46, s46, 4\ns_lshr_b32 s37, s37, s46\ns_and_b32 s37, s37, 0xffff')
    p('v_lshlrev_b32 v14, 3, v4\nv_add_u32 v14, v14, v3\nv_sub_u32 v14, 15, v14')
    p('v_and_b32 v15, 1, v14\nv_lshlrev_b32 v15, 4, v15\nv_lshlrev_b32 v15, v15, s37')
    p('v_ashrrev_i32 v14, 1, v14')
    for j in range(4):
        p(f'v_cmp_eq_u32 vcc, {j}, v14\nv_cndmask_b32 v{96+j}, 0, v15, vcc')
    p('s_waitcnt lgkmcnt(0)\ns_barrier')
    Fr = lambda b, i: b * 64 + 4 * i
    Gr = lambda b, j: b * 64 + 32 + 4 * j
    def loads(rho):
        b = rho & 1
        L = []
        def f(i):
            r = Fr(b, i)
            L.append(f'ds_read_b64 a[{r}:{r+1}], v12 offset:{512*i+64*rho}')
            L.append(f'ds_read_b64 a[{r+2}:{r+3}], v12 offset:{512*i+64*rho+8}')
        def g(j):
            r = Gr(b, j)
            L.append(f'ds_read_b128 a[{r}:{r+3}], v13 offset:{512*j+64*(7-rho)}')
        f(0)
        for j in range(8): g(j)
        for i in range(1, 8): f(i)
        return L
    p.extend(loads(0))
    XR, MR, RR, ACC = 100, 176, 208, 144
    p('v_lshrrev_b32 v14, 1, v4\nv_lshl_add_u32 v14, v3, 1, v14\ns_movk_i32 s34, 9216\nv_mul_lo_u32 v14, v14, s34')
    p('v_and_b32 v15, 1, v4\nv_lshl_add_u32 v14, v15, 3, v14')
    p(f's_lshl_b32 s46, s33, 4\ns_add_u32 s46, s46, {WS_XB}\nv_add_u32 v14, s46, v14')
    p('v_lshlrev_b32 v15, 6, v3\nv_lshl_add_u32 v15, v4, 4, v15')
    bg = []
    for j in range(8):
        bg.append(f's_mov_b32 s47, {j*294912}\nbuffer_load_dwordx2 v[{XR+2*j}:{XR+2*j+1}], v14, s[16:19], s47 offen')
        bg.append(f's_movk_i32 s48, {(j//4)*4096}\nbuffer_load_dwordx4 v[{MR+4*j}:{MR+4*j+3}], v15, s[24:27], s48 offen offset:{(j%4)*1024}')
        bg.append(f's_movk_i32 s48, {8192+(j//4)*4096}\nbuffer_load_dwordx4 v[{RR+4*j}:{RR+4*j+3}], v15, s[24:27], s48 offen offset:{(j%4)*1024}')
    pre = ['v_lshrrev_b32 v6, 2, v3', 's_mov_b32 s34, 73728', 'v_mul_lo_u32 v6, v6, s34', 'v_and_b32 v7, 3, v3',
           'v_lshl_add_u32 v6, v7, 5, v6', 'v_lshl_add_u32 v6, v4, 3, v6', 's_lshl_b32 s46, s33, 7', 'v_add_u32 v6, s46, v6',
           's_mov_b32 s49, 0xffff0000']
    XU, QN = 16, 48
    ep = []
    for j in range(8):
        for h in range(2):
            ep.append(f'v_lshlrev_b32 v{XU+4*j+2*h}, 16, v{XR+2*j+h}')
            ep.append(f'v_and_b32 v{XU+4*j+2*h+1}, s49, v{XR+2*j+h}')
        for jj in range(4):
            ep.append(f'v_sub_f32 v{QN+4*j+jj}, v{XU+4*j+jj}, v{MR+4*j+jj}')
        for jj in range(4):
            ep.append(f'v_mul_f32 v{QN+4*j+jj}, v{QN+4*j+jj}, v{RR+4*j+jj}')
    started = set()
    for rho in range(8):
        b = rho & 1
        mf = []
        for i in range(8):
            for j2 in range(8 - i):
                j = i + j2
                a = f'v[{ACC+4*j}:{ACC+4*j+3}]'
                c = a if j in started else '0'
                started.add(j)
                mf.append(f'v_mfma_f32_16x16x32_bf16 {a}, a[{Fr(b,i)}:{Fr(b,i)+3}], a[{Gr(b,j2)}:{Gr(b,j2)+3}], {c}')
        if rho == 0:
            for j in range(8):
                a = f'v[{ACC+4*j}:{ACC+4*j+3}]'
                mf.append(f'v_mfma_f32_16x16x32_bf16 {a}, v[96:99], a[{Gr(b,j)}:{Gr(b,j)+3}], {a}')
        fill = loads(rho + 1) if rho < 7 else []
        if rho == 0: fill = fill + bg[:12]
        if rho == 1: fill = fill + bg[12:] + pre
        if rho in (5, 6): fill = fill + ep[(rho - 5) * 32:(rho - 4) * 32]
        if rho == 7: fill = ep[64:]
        p.extend(interleave(mf, fill))
    fl = opt['h_store_flags']
    for j in range(8):
        for jj in range(4):
            p(f'v_fma_f32 v{XU+4*j+jj}, v{QN+4*j+jj}, v{ACC+4*j+jj}, v{XU+4*j+jj}')
        p(f'v_cvt_pk_bf16_f32 v{XR+2*j}, v{XU+4*j}, v{XU+4*j+1}')
        p(f'v_cvt_pk_bf16_f32 v{XR+2*j+1}, v{XU+4*j+2}, v{XU+4*j+3}')
        p(f's_mov_b32 s47, {j*294912}')
        p(f'buffer_store_dwordx2 v[{XR+2*j}:{XR+2*j+1}], v6, s[28:31], s47 offen {fl}')
    p('s_endpgm')
    p(';@pop')
    p(f'{name}_repack:')
    p('s_sub_u32 s32, s2, 144\ns_and_b32 s33, s32, 7\ns_lshr_b32 s34, s32, 3')
    p('s_waitcnt lgkmcnt(0)')
    if opt['code_prefetch']:
        p(f's_getpc_b64 s[60:61]')
        p(f'{name}_pc:')
        p(f's_add_u32 s60, s60, {k2name}-{name}_pc\ns_addc_u32 s61, s61, 0')
        p(f'v_lshlrev_b32 v20, 7, v0')
        p(f'v_cmp_gt_u32 vcc, {k3end}-{k2name}, v20')
        p(f's_and_saveexec_b64 s[62:63], vcc')
        p(f'global_load_dword v21, v20, s[60:61]')
        p(f's_mov_b64 exec, s[62:63]')
        p(f'v_add_u32 v20, 0x8000, v20')
        p(f'v_cmp_gt_u32 vcc, {k3end}-{k2name}, v20')
        p(f's_and_saveexec_b64 s[62:63], vcc')
        p(f's_cbranch_execz {name}_pf_done')
        p(f'global_load_dword v22, v20, s[60:61]')
        p(f'{name}_pf_done:')
        p(f's_mov_b64 exec, s[62:63]')
    srd(p, 20, 8, WBYTES, add=WS_W1P); srd(p, 24, 8, WBYTES, add=WS_W2P)
    p(f's_cmp_ge_u32 s34, 6\ns_cbranch_scc1 {name}_w2')
    p(';@push')
    srd(p, 16, 12, WBYTES)
    srd(p, 28, 14, F * 2)
    srd(p, 36, 8, 288 * 128, add=WS_CB)
    p('s_mul_i32 s35, s33, 576\ns_mul_i32 s40, s34, 96\ns_add_u32 s35, s35, s40')
    p('s_mul_i32 s40, s3, 144*9216\ns_lshl_b32 s41, s35, 1\ns_add_u32 s40, s40, s41')
    p('s_mul_i32 s41, s3, 144*192')
    p('s_movk_i32 s42, 5462\ns_movk_i32 s43, 9216')
    for ph in range(3):
        p(f'v_add_u32 v6, {64*ph}, v2\nv_mul_lo_u32 v7, v6, s42\nv_lshrrev_b32 v7, 16, v7')
        p(f'v_mul_u32_u24 v8, 12, v7\nv_sub_u32 v8, v6, v8\nv_mul_lo_u32 v7, v7, s43\nv_lshl_add_u32 v{10+ph}, v8, 4, v7')
    for grp in range(9):
        for ph in range(3):
            p(f's_add_u32 m0, s41, {grp*3072+ph*1024}')
            p(f'buffer_load_dwordx4 v{10+ph}, s[16:19], s40 offen lds')
        if grp < 8: p(f's_add_u32 s40, s40, {16*9216}')
    p('v_lshlrev_b32 v6, 1, v0\ns_lshl_b32 s44, s35, 1')
    p('buffer_load_ushort v30, v6, s[28:31], s44 offen')
    p('v_lshrrev_b32 v6, 2, v3\nv_lshl_add_u32 v6, v4, 3, v6\nv_mul_u32_u24 v6, 192, v6\nv_and_b32 v7, 3, v3\nv_lshl_add_u32 v6, v7, 3, v6')
    p('s_mul_i32 s45, s33, 36\ns_mul_i32 s46, s34, 6\ns_add_u32 s45, s45, s46')
    for a in range(3):
        p(f's_mul_i32 s46, s3, 3\ns_add_u32 s46, s46, {a}')
        p(f's_lshr_b32 s47, s46, 1\ns_and_b32 s48, s46, 1')
        p(f's_lshl_b32 s49, s47, 5\ns_mul_i32 s50, s48, {9*6144}\ns_add_u32 s49, s49, s50\nv_add_u32 v{13+a}, s49, v6')
        p(f's_add_u32 s49, s45, s47\ns_mul_i32 s49, s49, 18432\ns_mul_i32 s50, s48, 9216\ns_add_u32 s{52+a}, s49, s50')
    for j in range(4): p(f'v_mov_b32 v{24+j}, 0x3f803f80')
    p('s_waitcnt vmcnt(0)\ns_barrier')
    n = 0
    seq_r, seq_s = [], []
    for a in range(3):
        for tt in range(9):
            r = 32 + 4 * (n % 9)
            p(f'ds_read_b64_tr_b16 v[{r}:{r+1}], v{13+a} offset:{tt*6144}')
            p(f'ds_read_b64_tr_b16 v[{r+2}:{r+3}], v{13+a} offset:{tt*6144+768}')
            n += 1
        for tt in range(9):
            r = 32 + 4 * tt
            p(f'v_mfma_f32_16x16x32_bf16 v[{72+4*a}:{75+4*a}], v[24:27], v[{r}:{r+3}], ' + ('0' if tt == 0 else f'v[{72+4*a}:{75+4*a}]'))
            if tt % 4 == 0: p(f's_add_u32 s55, s{52+a}, {tt*1024}')
            p(f'buffer_store_dwordx4 v[{r}:{r+3}], v5, s[20:23], s55 offen offset:{(tt%4)*1024}')
    p('s_waitcnt lgkmcnt(0)\ns_barrier')
    p('s_mul_i32 s46, s3, 192\nv_lshl_add_u32 v6, v3, 2, s46')
    for a in range(3):
        p(f'ds_write_b32 v6, v{72+4*a} offset:{64*a}')
    p('s_waitcnt lgkmcnt(0)\ns_barrier')
    p('v_lshrrev_b32 v6, 4, v0\nv_lshlrev_b32 v7, 7, v6\nv_lshl_add_u32 v7, v3, 2, v7')
    p('v_cmp_gt_u32 vcc, 96, v0\ns_and_saveexec_b64 s[56:57], vcc')
    p(f's_cbranch_execz {name}_w1done')
    p(';@push')
    p('ds_read_b32 v8, v7\nds_read_b32 v9, v7 offset:64')
    p('v_lshlrev_b32 v30, 16, v30')
    p(f'v_mul_f32 v30, {f2h(LOG2E)}, v30')
    p('v_add_f32 v8, v8, v9')
    p('s_lshl_b32 s46, s45, 7')
    p('buffer_store_dword v8, v7, s[36:39], s46 offen\nbuffer_store_dword v30, v7, s[36:39], s46 offen offset:64')
    p(';@pop')
    p(f'{name}_w1done:')
    p('s_mov_b64 exec, s[56:57]')
    p(f's_branch {name}_flush')
    p(';@pop')
    p(f'{name}_w2:')
    p(';@push')
    srd(p, 16, 10, WBYTES)
    p('s_sub_u32 s34, s34, 6\ns_mul_i32 s35, s34, 3')
    p('s_mul_i32 s36, s33, 576')
    p('s_lshl_b32 s37, s3, 10\nv_add_u32 v6, s37, v5')
    for a in range(3):
        p(f's_add_u32 s38, s35, {a}')
        p('s_and_b32 s39, s38, 3\ns_mul_i32 s39, s39, 144\ns_lshr_b32 s40, s38, 2\ns_lshl_b32 s40, s40, 5\ns_add_u32 s39, s39, s40')
        p('s_add_u32 s40, s39, 16')
        p('s_cmp_eq_u32 s38, 16\ns_cselect_b32 s39, 128, s39\ns_cselect_b32 s40, 272, s40')
        p('s_cmp_eq_u32 s38, 17\ns_cselect_b32 s39, 416, s39\ns_cselect_b32 s40, 560, s40')
        for u in range(2):
            p(f's_add_u32 s41, s36, s{39+u}\ns_mul_i32 s41, s41, 1152')
            p(f's_add_u32 s42, s37, {(2*a+u)*18432}')
            for jj in range(5):
                if jj == 4:
                    p(f's_cmp_ge_u32 s3, 2\ns_cbranch_scc1 {name}_skip{a}{u}')
                    p(';@push')
                p(f's_add_u32 m0, s42, {jj*4096}')
                p(f'buffer_load_dwordx4 v6, s[16:19], s41 offen lds')
                if jj < 4: p('s_add_u32 s41, s41, 4096')
                if jj == 4:
                    p(';@pop')
                    p(f'{name}_skip{a}{u}:')
    p('v_lshrrev_b32 v7, 2, v3\nv_lshl_add_u32 v7, v4, 2, v7\ns_movk_i32 s43, 1152\nv_mul_lo_u32 v7, v7, s43')
    p('s_mul_i32 s43, s3, 288\nv_add_u32 v7, s43, v7\nv_and_b32 v8, 3, v3')
    p('v_lshl_add_u32 v10, v8, 4, v7')
    p('v_lshl_add_u32 v13, v8, 3, v7\nv_add_u32 v13, 256, v13')
    for a in (1, 2):
        p(f'v_add_u32 v{10+a}, {a*36864}, v10\nv_add_u32 v{13+a}, {a*36864}, v13')
    p('s_lshl_b32 s44, s33, 2\ns_add_u32 s44, s44, s3\ns_mul_i32 s44, s44, 9*18432\ns_lshl_b32 s45, s35, 10\ns_add_u32 s44, s44, s45')
    p('s_waitcnt vmcnt(0)\ns_barrier')
    for T in range(9):
        for a in range(3):
            r = 32 + 4 * ((3 * T + a) % 12)
            base = 10 + a if T < 8 else 13 + a
            off = 64 * (T >> 1) + 8 * (T & 1) if T < 8 else 0
            p(f'ds_read_b64_tr_b16 v[{r}:{r+1}], v{base} offset:{off}')
            p(f'ds_read_b64_tr_b16 v[{r+2}:{r+3}], v{base} offset:{off+18432}')
        if T >= 1:
            for a in range(3):
                r = 32 + 4 * ((3 * (T - 1) + a) % 12)
                p(f'buffer_store_dwordx4 v[{r}:{r+3}], v5, s[24:27], s44 offen offset:{a*1024}')
            p('s_add_u32 s44, s44, 18432')
    for a in range(3):
        r = 32 + 4 * ((3 * 8 + a) % 12)
        p(f'buffer_store_dwordx4 v[{r}:{r+3}], v5, s[24:27], s44 offen offset:{a*1024}')
    p(';@pop')
    p(f'{name}_flush:')
    if opt['wbl2']:
        p('s_waitcnt vmcnt(0)\ns_barrier')
        p(f's_cmp_lg_u32 s3, 0\ns_cbranch_scc1 {name}_end')
        p('buffer_wbl2 sc1\ns_waitcnt vmcnt(0)')
    p(f'{name}_end:\ns_endpgm')
    return khead(name) + '\n' + p.finalize() + '\n' + kd(name, 384, 256)

if __name__ == '__main__':
    print(gen_k1())
```

```python
from asm import *
from common import *
from k0 import ln_finalize

OPT = dict(wflags='nt', pflags='sc1', depth=29)
LDS_H = 73728
LDS_ST = 147456
LDS_CB = 147968
LDS_SIZE = 152576

def spread(slots, fill, lo, hi):
    n = hi - lo
    for i, f in enumerate(fill):
        slots[lo + (i * n) // len(fill)].append(f)

def gen_k2(name='k2_kernel', opt=OPT):
    p = Prog()
    DP = opt['depth']
    vW = 1
    vTR = [2, 3, 4, 5]; vHW = [6, 7, 8, 9]; vHR = [10, 11, 12, 13]; vCB = 14; vST = [15, 16, 17, 18]
    vD0, vD1 = 19, 20
    vN, vG = 21, 22
    vT = 23
    ACC1 = [24, 40]
    EV = [40, 56]; OD = [24, 72]
    CB = [56, 64]
    RS, NM = 72, 76
    TM = [80, 92]
    PK = [104, 106]
    EP = [88, 92]
    RT = 96
    ring = [f'a[{216+4*i}:{219+4*i}]' for i in range(10)] + [f'v[{108+4*i}:{111+4*i}]' for i in range(19)]
    ring = ring[:DP]
    def B(t, s):
        if s == 0: return 'v', 184 + 4 * t
        return 'a', 12 * t + 4 * (s - 1)
    def Bq(t, s): c, r = B(t, s); return f'{c}[{r}:{r+3}]'
    p(f's_cmp_ge_u32 s2, 256\ns_cbranch_scc1 {name}_end')
    p(f's_load_dwordx2 s[4:5], s[0:1], {KA["ws"]}')
    p('v_lshrrev_b32 v23, 6, v0')
    p('v_and_b32 v0, 63, v0')
    p('v_readfirstlane_b32 s3, v23')
    p(f'v_lshlrev_b32 v{vW}, 4, v0')
    p('s_and_b32 s6, s2, 7\ns_lshr_b32 s7, s2, 3')
    p(f'v_lshrrev_b32 v{vD1}, 4, v0\nv_and_b32 v{vD1}, 1, v{vD1}\nv_lshlrev_b32 v{vD1}, 1, v{vD1}')
    p(f'v_and_b32 v{vD0}, 7, v0\nv_xor_b32 v{vD0}, v{vD0}, v{vD1}\nv_lshlrev_b32 v{vD0}, 4, v{vD0}')
    p(f'v_lshrrev_b32 v{vD1}, 3, v0\nv_lshl_add_u32 v{vD0}, v{vD1}, 7, v{vD0}\nv_xor_b32 v{vD1}, 64, v{vD0}')
    p('s_mul_i32 s8, s7, 73728\ns_mul_i32 s9, s3, 18432\ns_add_u32 s8, s8, s9')
    p('s_lshl_b32 s10, s6, 2\ns_add_u32 s10, s10, s3\ns_mul_i32 s10, s10, 9*18432')
    p('s_waitcnt lgkmcnt(0)')
    srd(p, 12, 4, ARR, add=WS_HB)
    for i in range(18):
        p(f's_add_u32 m0, s9, {i*1024}')
        p(f'buffer_load_dwordx4 v{vD0 if i%2==0 else vD1}, s[12:15], s8 offen lds')
        if i < 17: p('s_add_u32 s8, s8, 1024')
    srd(p, 16, 4, 288 * 128, add=WS_CB)
    p('s_mul_i32 s11, s6, 4608\ns_mul_i32 s20, s3, 1152\ns_add_u32 s11, s11, s20')
    p(f's_add_u32 m0, s20, {LDS_CB}')
    p(f'buffer_load_dwordx4 v{vW}, s[16:19], s11 offen lds')
    p('s_mov_b64 exec, 255')
    p(f'buffer_load_dwordx4 v{vW}, s[16:19], s11 offen offset:1024 lds ; @DMA')
    p('s_mov_b64 exec, -1')
    p(f's_add_u32 s22, s10, {WS_W1P+4096}\ns_add_u32 s22, s4, s22\ns_addc_u32 s23, s5, 0')
    p(f's_add_u32 s24, s10, {WS_W2P+4096}\ns_add_u32 s24, s4, s24\ns_addc_u32 s25, s5, 0')
    def wload(n):
        L = []
        ph, m = divmod(n, 162)
        b = 22 if ph == 0 else 24
        L.append(f'global_load_dwordx4 {ring[n % DP]}, v{vW}, s[{b}:{b+1}] offset:{(m%8)*1024-4096} {opt["wflags"]}')
        if m % 8 == 7: L.append(f's_add_u32 s{b}, s{b}, 8192\ns_addc_u32 s{b+1}, s{b+1}, 0')
        return L
    for n in range(DP): p.extend(wload(n))
    p(f'v_and_b32 v{vN}, 15, v0\nv_lshrrev_b32 v{vG}, 4, v0')
    p(f'v_lshrrev_b32 v24, 2, v{vN}\nv_lshl_add_u32 v24, v{vG}, 3, v24\nv_lshlrev_b32 v24, 7, v24')
    p(f'v_and_b32 v25, 1, v{vN}\nv_lshl_add_u32 v24, v25, 3, v24')
    p(f'v_lshrrev_b32 v25, 3, v{vN}\nv_lshlrev_b32 v25, 1, v25\nv_and_b32 v26, 1, v{vG}\nv_lshl_add_u32 v25, v26, 2, v25')
    p(f'v_lshrrev_b32 v26, 1, v{vN}\nv_and_b32 v26, 1, v26\nv_xor_b32 v25, v25, v26')
    for s in range(4):
        p(f's_add_u32 s26, s3, {s}\ns_and_b32 s26, s26, 3')
        p(f's_lshl_b32 s{28+s}, s26, 10')
        p(f's_lshl_b32 s27, s26, 1\nv_xor_b32 v26, s27, v25\nv_lshl_add_u32 v{vTR[s]}, v26, 4, v24')
        p(f's_add_u32 s27, s{28+s}, {LDS_H}\nv_add_u32 v{vHR[s]}, s27, v{vW}')
        p(f's_lshl_b32 s32, s3, 12\nv_add_u32 v{vHW[s]}, s32, v{vHR[s]}')
        p(f's_lshl_b32 s27, s26, 7\ns_add_u32 s27, s27, {LDS_ST}\nv_lshl_add_u32 v{vST[s]}, v{vN}, 3, s27')
        p(f's_mul_i32 s27, s26, 5\ns_mul_i32 s32, s3, 20\ns_add_u32 s27, s27, s32\ns_sub_u32 s{36+s}, s27, s6')
    p(f's_add_u32 s27, s20, {LDS_CB}\nv_lshl_add_u32 v{vCB}, v{vG}, 4, s27')
    srd(p, 40, 4, 8 * ARR, add=WS_PART)
    p(f's_mul_i32 s44, s6, {ARR}\ns_mul_i32 s45, s7, 73728\ns_add_u32 s44, s44, s45')
    p('s_lshl_b32 s45, s3, 11\ns_add_u32 s45, s45, s44\ns_add_u32 s45, s45, 65536')
    p('s_lshl_b32 s46, s3, 14\ns_add_u32 s44, s44, s46')
    p('s_mov_b32 s47, 0x3f803f80\ns_mov_b32 s48, 0xffff0000')
    p(f's_mov_b32 s49, {f2h(LOG2E)}')
    p('s_lshr_b32 s50, s3, 1\ns_add_u32 s50, s50, 16\ns_sub_u32 s50, s50, s3\ns_lshl_b32 s50, s50, 12\ns_and_b32 s51, s3, 1\ns_lshl_b32 s51, s51, 3\ns_add_u32 s50, s50, s51')
    p('s_barrier')

    def trr(t, s):
        c, r = B(t, s)
        off = (t % 16) * 4096
        return [f'ds_read_b64_tr_b16 {c}[{r}:{r+1}], v{vTR[s]} offset:{off}',
                f'ds_read_b64_tr_b16 {c}[{r+2}:{r+3}], v{vTR[s]} offset:{off+512}']
    def hread(t, s):
        return f'ds_read_b128 {Bq(t, s)}, v{vHR[s]} offset:{(t % 16) * 4096}'
    def bump(regs, d):
        return [f'v_add_u32 v{r}, {d}, v{r}' for r in regs]

    def emit_pass(n0, accbase, slots, post=None):
        for t in range(18):
            n = n0 + t
            for s in range(4):
                a = f'v[{accbase+4*s}:{accbase+4*s+3}]'
                p(f'v_mfma_f32_16x16x32_bf16 {a}, {ring[n % DP]}, {Bq(t, s)}, ' + ('0' if t == 0 else a))
                if s == 3:
                    if n + DP < 324: p.extend(wload(n + DP))
                    if post: p.extend(post(t))
                p.extend(slots[4 * t + s])

    def mish(T):
        acc = ACC1[T & 1]; cb = CB[T & 1]
        L = []
        if T == 8: L += [f'v_add_u32 v{r}, s50, v{r}' for r in vHW]
        for s in range(4):
            tm = TM[s & 1]; S_, E_, P_ = tm, tm + 4, tm + 8; pk = PK[s & 1]
            for j in range(4): L.append(f'v_fma_f32 v{S_+j}, v{NM+s}, v{cb+j}, v{cb+4+j}')
            for j in range(4): L.append(f'v_fma_f32 v{S_+j}, v{acc+4*s+j}, v{RS+s}, v{S_+j}')
            for j in range(4): L.append(f'v_exp_f32 v{E_+j}, v{S_+j}')
            for j in range(4): L.append(f'v_fma_f32 v{P_+j}, v{E_+j}, 0.5, 1.0')
            for j in range(4): L.append(f'v_fma_f32 v{P_+j}, v{P_+j}, v{E_+j}, 1.0')
            for j in range(4): L.append(f'v_rcp_f32 v{P_+j}, v{P_+j}')
            for j in range(4): L.append(f'v_fma_f32 v{S_+j}, -v{S_+j}, v{P_+j}, v{S_+j}')
            L.append(f'v_cvt_pk_bf16_f32 v{pk}, v{S_}, v{S_+1}')
            L.append(f'v_cvt_pk_bf16_f32 v{pk+1}, v{S_+2}, v{S_+3}')
            off = (T >> 1) * 16384 + 8 * (T & 1) if T < 8 else 0
            L.append(f'ds_write_b64 v{vHW[s]}, v[{pk}:{pk+1}] offset:{off}')
        return L
    def cbload(T):
        cb = CB[T & 1]
        return [f'ds_read_b128 v[{cb}:{cb+3}], v{vCB} offset:{T*128}', f'ds_read_b128 v[{cb+4}:{cb+7}], v{vCB} offset:{T*128+64}']

    for t in range(2):
        for s in range(4): p.extend(trr(t, s))
    SA = 80
    slots = [[] for _ in range(72)]
    for t in range(18):
        L = []
        if t + 2 == 16: L += bump(vTR, 0x10000)
        if t + 2 < 18:
            for s in range(4): L += trr(t + 2, s)
        D = []
        for j in range(4):
            r = 184 + 4 * t + j
            first = (t == 0 and j < 2)
            D.append(f'v_dot2_f32_bf16 v{SA+(j&1)}, v{r}, s47, ' + ('0' if first else f'v{SA+(j&1)}'))
            D.append(f'v_dot2_f32_bf16 v{SA+2+(j&1)}, v{r}, v{r}, ' + ('0' if first else f'v{SA+2+(j&1)}'))
        for i in range(4):
            slots[4 * t + i] += L[i * len(L) // 4:(i + 1) * len(L) // 4] + D[2 * i:2 * i + 2]
    slots[71] += bump(vTR, 0xffff0000) + cbload(0)
    emit_pass(0, ACC1[0], slots)
    st = Prog()
    st(f'v_add_f32 v{SA}, v{SA}, v{SA+1}\nv_add_f32 v{SA+2}, v{SA+2}, v{SA+3}')
    st(f'v_permlane32_swap_b32 v{SA}, v{SA+2}\nv_add_f32 v{SA}, v{SA}, v{SA+2}')
    st(f'v_mov_b32 v{SA+1}, v{SA}\nv_permlane16_swap_b32 v{SA}, v{SA+1}\nv_add_f32 v{SA}, v{SA}, v{SA+1}')
    st(f'v_mov_b32 v{SA+2}, v{SA}\nv_permlane32_swap_b32 v{SA}, v{SA+2}')
    ln_finalize(st, SA, SA + 2, SA + 4, SA + 5, 52)
    st(f'v_rcp_f32 v{SA+5}, v{SA+5}\nv_mul_f32 v{SA+6}, s49, v{SA+5}\nv_mul_f32 v{SA+7}, -v{SA+4}, v{SA+6}'.replace(f'v_mul_f32 v{SA+7}, -v', f'v_mul_f32_e64 v{SA+7}, -v'))
    st(f'ds_write_b64 v{vST[0]}, v[{SA+6}:{SA+7}]')
    st('s_waitcnt lgkmcnt(0)\ns_barrier')
    for s in range(4):
        st(f'ds_read2_b32 v[{TM[1]+2*s}:{TM[1]+2*s+1}], v{vST[s]} offset0:0 offset1:1')
    for s in range(4):
        st(f'v_mov_b32 v{RS+s}, v{TM[1]+2*s}\nv_mov_b32 v{NM+s}, v{TM[1]+2*s+1}')
    stat_tail = [i.text for i in st.l]
    for T in range(1, 9):
        slots = [[] for _ in range(72)]
        post = None
        if T == 1:
            spread(slots, stat_tail, 2, 22)
            spread(slots, mish(0), 22, 70)
        else:
            spread(slots, mish(T - 1), 2, 70)
        slots[66] += cbload(T)
        if T == 8:
            slots[0] = ['s_waitcnt lgkmcnt(0)', 's_barrier'] + slots[0]
            post = lambda t: [hread(t, s) for s in range(4)] if t < 12 else []
        emit_pass(18 * T, ACC1[T & 1], slots, post)
    def item(P, s):
        e0, e1 = EV[P & 1] + 4 * s, OD[P & 1] + 4 * s
        ep = EP[s & 1]
        lab = f'{name}_res{P}_{s}'
        blk = [f's_add_u32 s53, s{36+s}, {P}', 's_and_b32 s53, s53, 7', f's_cbranch_scc1 {lab}', ';@push']
        if P < 4:
            blk += [f'v_add_u32 v{vT}, s9, v{vTR[s]}',
                    f'ds_read_b64_tr_b16 v[{RT}:{RT+1}], v{vT} offset:{4096*P}',
                    f'ds_read_b64_tr_b16 v[{RT+2}:{RT+3}], v{vT} offset:{4096*P+512}']
            nd = 4
        else:
            blk += [f'v_lshrrev_b32 v{RT}, 2, v{vN}', f'v_lshl_add_u32 v{RT}, v{vG}, 2, v{RT}', f'v_lshlrev_b32 v{RT}, 7, v{RT}',
                    f'v_and_b32 v{RT+1}, 1, v{vN}', f'v_lshl_add_u32 v{RT}, v{RT+1}, 3, v{RT}',
                    f'v_lshrrev_b32 v{RT+1}, 3, v{vN}', f'v_lshlrev_b32 v{RT+1}, 1, v{RT+1}',
                    f'v_lshrrev_b32 v{RT+2}, 1, v{vG}', f'v_lshl_add_u32 v{RT+1}, v{RT+2}, 2, v{RT+1}',
                    f'v_lshrrev_b32 v{RT+2}, 1, v{vN}', f'v_and_b32 v{RT+2}, 1, v{RT+2}', f'v_xor_b32 v{RT+1}, v{RT+1}, v{RT+2}',
                    f's_lshr_b32 s54, s{28+s}, 9', f'v_xor_b32 v{RT+1}, s54, v{RT+1}', f'v_lshl_add_u32 v{RT}, v{RT+1}, 4, v{RT}',
                    f'v_add_u32 v{vT}, s9, v{RT}',
                    f'ds_read_b64_tr_b16 v[{RT}:{RT+1}], v{vT} offset:16384']
            nd = 2
        for d in range(nd):
            a = (e0 if d < 2 else e1) + 2 * (d & 1)
            blk += [f'v_lshlrev_b32 v{RT+4}, 16, v{RT+d}', f'v_and_b32 v{RT+5}, s48, v{RT+d}',
                    f'v_fma_f32 v{a}, v{RT+4}, s49, v{a}', f'v_fma_f32 v{a+1}, v{RT+5}, s49, v{a+1}']
        blk += ['s_nop 1', ';@pop', f'{lab}:']
        L = ['\n'.join(blk)]
        L += [f'v_cvt_pk_bf16_f32 v{ep}, v{e0}, v{e0+1}', f'v_cvt_pk_bf16_f32 v{ep+1}, v{e0+2}, v{e0+3}']
        if P < 4:
            L += [f'v_cvt_pk_bf16_f32 v{ep+2}, v{e1}, v{e1+1}', f'v_cvt_pk_bf16_f32 v{ep+3}, v{e1+2}, v{e1+3}']
            L += [f's_add_u32 s55, s44, s{28+s}\ns_add_u32 s55, s55, {P*4096}',
                  f'buffer_store_dwordx4 v[{ep}:{ep+3}], v{vW}, s[40:43], s55 offen {opt["pflags"]}']
        else:
            L += [f's_lshr_b32 s55, s{28+s}, 1\ns_add_u32 s55, s55, s45', f'v_lshrrev_b32 v{vT}, 1, v{vW}',
                  f'buffer_store_dwordx2 v[{ep}:{ep+1}], v{vT}, s[40:43], s55 offen {opt["pflags"]}']
        return L
    for T in range(9):
        slots = [[] for _ in range(72)]
        if T == 0:
            slots[0] = ['s_waitcnt lgkmcnt(0)', 's_barrier']
            spread(slots, [hread(t, s) for t in range(12, 16) for s in range(4)], 1, 20)
            spread(slots, mish(8), 2, 48)
            slots[48] += ['s_waitcnt lgkmcnt(0)', 's_barrier'] + bump(vHR, 0x10000) + [hread(t, s) for t in (16, 17) for s in range(4)]
        elif T % 2 == 0:
            P = T // 2 - 1
            its = []
            for s in range(4): its += item(P, s)
            spread(slots, its, 3, 60)
        emit_pass(162 + 18 * T, (OD if T & 1 else EV)[(T >> 1) & 1], slots)
    for s in range(4): p.extend(item(4, s))
    p(f'{name}_end:\ns_endpgm')
    return khead(name) + '\n' + p.finalize() + '\n' + kd(name, 512, 256)

if __name__ == '__main__':
    print(gen_k2())
```

```python
from asm import *
from common import *

def gen_k3(name='k3_kernel'):
    p = Prog()
    p(f's_cmp_ge_u32 s2, 256\ns_cbranch_scc1 {name}_end')
    p(f's_load_dwordx2 s[4:5], s[0:1], {KA["out"]}')
    p(f's_load_dwordx2 s[6:7], s[0:1], {KA["ws"]}')
    p('v_lshrrev_b32 v1, 6, v0')
    p('v_and_b32 v2, 63, v0')
    p('v_readfirstlane_b32 s8, v1')
    p('s_lshr_b32 s9, s2, 3')
    p('s_and_b32 s10, s2, 7')
    p('s_lshr_b32 s11, s10, 1')
    p('s_and_b32 s12, s10, 1')
    p('s_and_b32 s13, s8, 1')
    p('s_lshl_b32 s12, s12, 1\ns_add_u32 s12, s12, s13')
    p('v_and_b32 v3, 15, v2')
    p('v_lshrrev_b32 v4, 4, v2')
    p('s_lshl_b32 s14, s9, 6\ns_lshl_b32 s15, s12, 4\ns_add_u32 s14, s14, s15')
    p('v_add_u32 v3, s14, v3')
    p('s_movk_i32 s15, 1152')
    p('v_mul_lo_u32 v3, v3, s15')
    p('s_mul_i32 s16, s11, 288')
    p('s_mul_i32 s17, s9, 73728')
    p('s_waitcnt lgkmcnt(0)')
    srd(p, 20, 4, ARR); srd(p, 24, 6, 8 * ARR, add=WS_PART)
    p(f's_mov_b32 s30, {f2h(LN2)}\ns_mov_b32 s31, 0xffff0000')
    p(f's_cmp_ge_u32 s8, 8\ns_cbranch_scc1 {name}_B')
    for typ in 'AB':
        n = 4 if typ == 'A' else 2
        p(';@push')
        if typ == 'A':
            p('s_lshr_b32 s18, s8, 1')
            p('s_lshl_b32 s19, s11, 2\ns_add_u32 s19, s19, s18\ns_lshl_b32 s19, s19, 2\ns_add_u32 s19, s19, s12\ns_lshl_b32 s19, s19, 10')
            p('s_add_u32 s17, s17, s19')
            p('v_lshlrev_b32 v5, 4, v2')
            p('s_lshl_b32 s18, s18, 6\ns_add_u32 s16, s16, s18')
            p('v_lshlrev_b32 v4, 4, v4')
        else:
            p(f'{name}_B:')
            p('s_lshl_b32 s19, s11, 2\ns_add_u32 s19, s19, s12\ns_lshl_b32 s19, s19, 9')
            p('s_add_u32 s17, s17, s19\ns_add_u32 s17, s17, 65536')
            p('v_lshlrev_b32 v5, 3, v2')
            p('s_add_u32 s16, s16, 256')
            p('v_lshlrev_b32 v4, 3, v4')
        sfx = 'x4' if n == 4 else 'x2'
        for x in range(8):
            p(f'buffer_load_dword{sfx} v[{8+4*x}:{8+4*x+n-1}], v5, s[24:27], s17 offen')
            if x < 7: p(f's_add_u32 s17, s17, {ARR}')
        p('v_add3_u32 v3, v3, v4, s16')
        A = 40
        for x in range(8):
            for j in range(n):
                r = 8 + 4 * x + j
                if x == 0:
                    p(f'v_lshlrev_b32 v{A+2*j}, 16, v{r}\nv_and_b32 v{A+2*j+1}, s31, v{r}')
                else:
                    p(f'v_lshlrev_b32 v{48+2*j}, 16, v{r}\nv_and_b32 v{49+2*j}, s31, v{r}')
            if x:
                for j in range(n):
                    p(f'v_pk_add_f32 v[{A+2*j}:{A+2*j+1}], v[{A+2*j}:{A+2*j+1}], v[{48+2*j}:{49+2*j}]')
        for j in range(2 * n):
            p(f'v_mul_f32 v{A+j}, s30, v{A+j}')
        for j in range(n):
            p(f'v_cvt_pk_bf16_f32 v{8+j}, v{A+2*j}, v{A+2*j+1}')
        p(f'buffer_store_dword{sfx} v[8:{8+n-1}], v3, s[20:23], 0 offen')
        p('s_endpgm')
        p(';@pop')
    p(f'{name}_end:\ns_endpgm')
    return khead(name) + '\n' + p.finalize() + '\n' + kd(name, 64, 64)

if __name__ == '__main__':
    print(gen_k3())
```

```python
import sys, importlib
import k0, k1, k2, k3
from common import *
NAME = 'sequential_preLN__ssm_conv_h3__dense_activation_mish__prompt'
def build(path, o1=None, o2=None, launches=None, extra=''):
    a1 = dict(k1.OPT); a1.update(o1 or {})
    a2 = dict(k2.OPT); a2.update(o2 or {})
    ref = open('cdna_kernels/' + NAME + '.s.ref').read().split('\n')
    head = [l for l in ref if l.startswith('; Kernarg') or l.startswith(';   offset')]
    L = launches or [('k0_kernel', 256, 320, 512), ('k1_kernel', 240, 256, 110592), ('k2_kernel', 256, 256, k2.LDS_SIZE), ('k3_kernel', 256, 640, 0)]
    for k, g, b, l in L:
        head.append(f'; @launch kernel={k} grid=({g},1,1) block=({b},1,1) lds={l}')
    body = ['.amdgcn_target "amdgcn-amd-amdhsa--gfx950"', k0.gen_k0(), k1.gen_k1(opt=a1), k2.gen_k2(opt=a2), k3.gen_k3(), extra]
    txt = '\n'.join(head) + '\n' + '\n'.join(body) + '\n'
    txt = '\n'.join(l for l in txt.split('\n') if not l.strip().startswith(';@'))
    open(path, 'w').write(txt)
if __name__ == '__main__':
    build(sys.argv[1] if len(sys.argv) > 1 else 'cdna_kernels/' + NAME + '.s')
```

```python
import build, k2
from asm import khead, kd
E = khead('e_kernel') + '\n  s_endpgm\n' + kd('e_kernel', 8, 8)
K0=('k0_kernel', 256, 320, 512); K1=('k1_kernel', 240, 256, 110592); K2=('k2_kernel', 256, 256, k2.LDS_SIZE); K3=('k3_kernel', 256, 640, 0); KE=('e_kernel',256,64,0)
build.build('pa.s', launches=[K0,K1,K2,K3])
build.build('pb.s', launches=[K0,K1,K2,K3,KE,KE,KE,KE], extra=E)
build.build('pc.s', launches=[K0,K1,K2,K3,K0,K1,K2,K3])
build.build('pd.s', launches=[K0,K0,K1,K2,K3])
build.build('pe.s', launches=[K0,K1,K1,K2,K3])
build.build('pf.s', launches=[K0,K1,K2,K2,K3])
```
